```python
import torch

def _softmax(x, axis=-1):
    return torch.softmax(x, dim=axis)
def _gelu(x):
    return torch.nn.functional.gelu(x, approximate="tanh")
def _silu(x):
    return torch.nn.functional.silu(x)
def _sigmoid(x):
    return torch.sigmoid(x)
def _layernorm(x, axis=-1, eps=1e-5):
    m = x.mean(dim=axis, keepdim=True)
    v = x.var(dim=axis, keepdim=True, unbiased=False)
    return (x - m) / torch.sqrt(v + eps)
def _scatter_add(tgt, idx, src, axis=0):
    return tgt.clone().index_add_(axis, idx, src)
def _segment_sum(src, seg, n):
    out = torch.zeros((n,) + src.shape[1:], dtype=src.dtype)
    return out.index_add_(0, seg, src)
def _pad(x, pw):
    flat = tuple(v for pair in reversed(pw) for v in pair)
    return torch.nn.functional.pad(x, flat)

kernel_name = 'standalone__mha_softmax__near_ridge'

def setup_inputs():

    _w = (lambda a: (lambda t: t.to(torch.bfloat16) if t.is_floating_point() else t)(torch.as_tensor(a)))
    B, H, Sq, Sk, D = 16, 32, 512, 512, 192
    return {
        "q": _w((lambda *s: torch.randn(*s, dtype=torch.bfloat16) * 0.8)(B, H, Sq, D)),
        "k": _w((lambda *s: torch.randn(*s, dtype=torch.bfloat16) * 0.8)(B, H, Sk, D)),
        "v": _w((lambda *s: torch.randn(*s, dtype=torch.bfloat16) * 0.05)(B, H, Sk, D)),
    }

def reference(q, k, v):
    scale = q.shape[-1] ** -0.5
    scores = torch.einsum("bhqd,bhkd->bhqk", q, k) * scale
    p = _softmax(scores, axis=-1)
    return torch.einsum("bhqk,bhkd->bhqd", p, v)
```

```python
import math
import sys
import argparse

NAME = "standalone__mha_softmax__near_ridge"

class Cfg:
    LEAD = 5
    NF = 6
    BK_GAP = 12
    BV_GAP = 12
    TOUCH_ITER = 3
    TOUCH_N = 3
    Q_NT = False
    O_NT = False
    KV_NT = False
    THR = 8.0
    PRIO = 0

cfg = Cfg()

VO = 0
VQ = 96
VS = 144
VF = 208
VKA = 232
VVA = 236
VDK = 238
VDV = 241
VQO = 244
VNM = 245
VTH = 246
VL0 = 247
VL1 = 248
VMX0 = 249
VMX1 = 250
VAL = 251
VIL = 252
VT = 253
VTO = 254
VDUM = 255

SQ = 4
SK = 8
SV = 12
SO = 16
S_C = 20
S_NEGC = 21
S_TC = 22
S_NINVC = 23
S_ITEM = 24
S_QN = 25
S_OO = 26
S_KO = 27
S_VO = 28
S_R0 = 29
S_R1 = 30
S_R2 = 31
S_FLAG = 32
S_WV = 33
S_T0 = 34
S_T1 = 35
S_QC = 36
S_WVV = 37
S_P = 40

TILE = 24576
VBASE = 3 * TILE
HEAD_BYTES = 196608
ITEM_STRIDE = 128 * HEAD_BYTES
TOTAL = 100663296


def v(i, n=1):
    return f"v{i}" if n == 1 else f"v[{i}:{i+n-1}]"


def s(i, n=1):
    return f"s{i}" if n == 1 else f"s[{i}:{i+n-1}]"


def vr(i, n=1):
    return [f"v{k}" for k in range(i, i + n)]


def sr(i, n=1):
    return [f"s{k}" for k in range(i, i + n)]


class I:
    __slots__ = ("text", "kind", "rd", "wr", "cost", "tag", "rdc", "lg", "vm", "nop", "earliest", "latest", "cmt")

    def __init__(self, text, kind, rd=(), wr=(), cost=1, tag=None, rdc=(), earliest=None, latest=None):
        self.text = text
        self.kind = kind
        self.rd = list(rd)
        self.wr = list(wr)
        self.cost = cost
        self.tag = tag
        self.rdc = list(rdc)
        self.lg = None
        self.vm = None
        self.nop = 0
        self.earliest = earliest
        self.latest = latest


def mfma(d, a, b, czero):
    c = "0" if czero else v(d, 16)
    return I(f"v_mfma_f32_32x32x16_bf16 {v(d,16)}, {v(a,4)}, {v(b,4)}, {c}", "mfma",
             rd=vr(a, 4) + vr(b, 4), wr=vr(d, 16), rdc=[] if czero else vr(d, 16), cost=2)


def valu(text, rd, wr, cost=1, kind="valu", **kw):
    return I(text, kind, rd=rd, wr=wr, cost=cost, **kw)


def salu(text, rd=(), wr=()):
    return I(text, "salu", rd=rd, wr=wr, cost=0.5)


def sreg_S(b, h):
    return VS + 32 * b + 16 * h


def frag(k):
    return VF + 4 * (k % cfg.NF)


def k_read(k):
    h, st = divmod(k, 12)
    off = (st >> 2) * 128 + h * 12288
    f = frag(k)
    return [I(f"ds_read_b128 {v(f,4)}, {v(VKA + (st & 3))} offset:{off}", "ds",
              rd=[v(VKA + (st & 3))], wr=vr(f, 4))]


def v_read(k):
    db, t = divmod(k, 4)
    f = frag(24 + k)
    out = []
    for second in range(2):
        off = (db >> 1) * 128 + t * 6144 + second * 3072
        out.append(I(f"ds_read_b64_tr_b16 {v(f + 2*second,2)}, {v(VVA + (db & 1))} offset:{off}", "ds",
                     rd=[v(VVA + (db & 1))], wr=vr(f + 2 * second, 2)))
    return out


def qk_mfma(k, b):
    h, st = divmod(k, 12)
    return mfma(sreg_S(b, h), frag(k), VQ + 4 * st, st == 0)


def p_reg(b, t):
    return sreg_S(b, t >> 1) + 8 * (t & 1)


def pv_mfma(k, b, first):
    db, t = divmod(k, 4)
    return mfma(VO + 16 * db, frag(24 + k), p_reg(b, t), first and t == 0)


def dma(which, tag):
    out = []
    nt = " nt" if cfg.KV_NT else ""
    if which == "K":
        out.append(salu(f"s_add_u32 m0, {s(S_R1)}, {s(S_WV)}", rd=[s(S_R1), s(S_WV)], wr=["m0", "scc"]))
        srd, so, vo = SK, S_KO, VDK
    else:
        out.append(salu(f"s_add_u32 m0, {s(S_R2)}, {s(S_WVV)}", rd=[s(S_R2), s(S_WVV)], wr=["m0", "scc"]))
        srd, so, vo = SV, S_VO, VDV
    for n in range(3):
        o = f" offset:{n*1024}" if n else ""
        out.append(I(f"buffer_load_dwordx4 {v(vo+n)}, {s(srd,4)}, {s(so)} offen{o}{nt} lds", "dma",
                     rd=[v(vo + n), "m0", s(so)] + sr(srd, 4), tag=tag, cost=2))
    return out


def dma_adv(which, tile_in_item):
    so = S_KO if which == "K" else S_VO
    d = TILE if tile_in_item != 7 else ITEM_STRIDE - 7 * TILE
    return salu(f"s_add_u32 {s(so)}, {s(so)}, {d}", rd=[s(so)], wr=[s(so), "scc"])


def wait_dma(tag):
    return I("", "waitdma", tag=tag, cost=0.5)


def barrier():
    return I("s_barrier", "barrier", cost=0.5)


def q_load(st, soff):
    nt = " nt" if cfg.Q_NT else ""
    o = f" offset:{st*32}" if st else ""
    return I(f"buffer_load_dwordx4 {v(VQ+4*st,4)}, {v(VQO)}, {s(SQ,4)}, {s(soff)} offen{o}{nt}", "vld",
             rd=[v(VQO), s(soff)] + sr(SQ, 4), wr=vr(VQ + 4 * st, 4), cost=2)


def touch(n):
    o = f" offset:{n * (12288 // cfg.TOUCH_N) % 4096}" if False else ""
    stride = 12288 // cfg.TOUCH_N
    off = n * stride
    assert off < 4096 * 3
    return off


uid = [0]


def newlabel(p):
    uid[0] += 1
    return f"L_{p}_{uid[0]}"


OUTLINE = []


def softmax_ops(b, first):
    ops = []
    S0, S1 = sreg_S(b, 0), sreg_S(b, 1)
    for mx, S in ((VMX0, S0), (VMX1, S1)):
        ops.append(valu(f"v_max3_f32 {v(mx)}, {v(S)}, {v(S+1)}, {v(S+2)}", vr(S, 3), [v(mx)]))
        for i in range(3, 15, 2):
            ops.append(valu(f"v_max3_f32 {v(mx)}, {v(mx)}, {v(S+i)}, {v(S+i+1)}", [v(mx), v(S + i), v(S + i + 1)], [v(mx)]))
    ops.append(valu(f"v_max3_f32 {v(VMX0)}, {v(VMX0)}, {v(S0+15)}, {v(S1+15)}", [v(VMX0), v(S0 + 15), v(S1 + 15)], [v(VMX0)]))
    ops.append(valu(f"v_max_f32 {v(VMX0)}, {v(VMX0)}, {v(VMX1)}", [v(VMX0), v(VMX1)], [v(VMX0)]))
    if first:
        ops.append(valu(f"v_mov_b32 {v(VMX1)}, {v(VMX0)}", [v(VMX0)], [v(VMX1)]))
        ops.append(valu(f"v_mov_b32 {v(VL0)}, 0", [], [v(VL0)]))
        ops.append(valu(f"v_mov_b32 {v(VL1)}, 0", [], [v(VL1)]))
        ops.append(valu(f"v_permlane32_swap_b32 {v(VMX1)}, {v(VMX0)}", [v(VMX0), v(VMX1)], [v(VMX0), v(VMX1)], kind="perm"))
        ops.append(valu(f"v_max_f32 {v(VMX0)}, {v(VMX0)}, {v(VMX1)}", [v(VMX0), v(VMX1)], [v(VMX0)]))
        ops.append(valu(f"v_mul_f32 {v(VNM)}, {s(S_NEGC)}, {v(VMX0)}", [v(VMX0), s(S_NEGC)], [v(VNM)]))
        ops.append(valu(f"v_add_f32 {v(VTH)}, {s(S_TC)}, {v(VMX0)}", [v(VMX0), s(S_TC)], [v(VTH)]))
    else:
        la, lb = newlabel("rareA"), newlabel("backA")
        ops.append(valu(f"v_cmp_gt_f32 vcc, {v(VMX0)}, {v(VTH)}", [v(VMX0), v(VTH)], ["vcc"]))
        br = I(f"s_cbranch_vccnz {la}\n{lb}:", "branch", rd=["vcc", v(VMX0), v(VNM), v(VL0), v(VL1)],
               wr=[v(VMX0), v(VMX1), v(VT), v(VAL), v(VNM), v(VTH), v(VL0), v(VL1), s(S_FLAG)], cost=0.5)
        ops.append(br)
        OUTLINE.append(f"""{la}:
    v_mov_b32 {v(VMX1)}, {v(VMX0)}
    s_nop 1
    v_permlane32_swap_b32 {v(VMX1)}, {v(VMX0)}
    s_nop 1
    v_max_f32 {v(VMX0)}, {v(VMX0)}, {v(VMX1)}
    v_mul_f32 {v(VT)}, {s(S_NEGC)}, {v(VMX0)}
    v_min_f32 {v(VT)}, {v(VT)}, {v(VNM)}
    v_sub_f32 {v(VAL)}, {v(VT)}, {v(VNM)}
    v_exp_f32 {v(VAL)}, {v(VAL)}
    v_mov_b32 {v(VNM)}, {v(VT)}
    v_mul_f32 {v(VTH)}, {s(S_NINVC)}, {v(VT)}
    v_add_f32 {v(VTH)}, {s(S_TC)}, {v(VTH)}
    v_mul_f32 {v(VL0)}, {v(VL0)}, {v(VAL)}
    v_mul_f32 {v(VL1)}, {v(VL1)}, {v(VAL)}
    s_mov_b32 {s(S_FLAG)}, 1
    s_nop 1
    s_branch {lb}
""")
    elems = [S0 + i for i in range(16)] + [S1 + i for i in range(16)]

    def fma(r):
        return valu(f"v_fma_f32 {v(r)}, {v(r)}, {s(S_C)}, {v(VNM)}", [v(r), s(S_C), v(VNM)], [v(r)])

    def ex(r):
        return valu(f"v_exp_f32 {v(r)}, {v(r)}", [v(r)], [v(r)], cost=2, kind="trans")

    def add(r, i):
        l = VL0 if (i & 1) == 0 else VL1
        return valu(f"v_add_f32 {v(l)}, {v(l)}, {v(r)}", [v(l), v(r)], [v(l)])

    def cvt(pi):
        r0 = elems[2 * pi]
        base = elems[(2 * pi) // 8 * 8]
        d = base + (pi % 4)
        return valu(f"v_cvt_pk_bf16_f32 {v(d)}, {v(r0)}, {v(r0+1)}", [v(r0), v(r0 + 1)], [v(d)])

    n = 16
    for step in range(n + 2):
        if step < n:
            ops.append(fma(elems[2 * step]))
            ops.append(fma(elems[2 * step + 1]))
        if 0 <= step - 1 < n:
            ops.append(ex(elems[2 * (step - 1)]))
            ops.append(ex(elems[2 * (step - 1) + 1]))
        if 0 <= step - 2 < n:
            p = step - 2
            ops.append(add(elems[2 * p], 0))
            ops.append(add(elems[2 * p + 1], 1))
            ops.append(cvt(p))
    return ops


def rescaleB_check():
    la, lb = newlabel("rareB"), newlabel("backB")
    ops = [salu(f"s_cmp_lg_u32 {s(S_FLAG)}, 0", rd=[s(S_FLAG)], wr=["scc"]),
           I(f"s_cbranch_scc1 {la}\n{lb}:", "branchB", rd=["scc", v(VAL)], wr=[s(S_FLAG)], cost=0.5)]
    body = "\n".join(f"    v_mul_f32 {v(VO+i)}, {v(VO+i)}, {v(VAL)}" for i in range(96))
    OUTLINE.append(f"""{la}:
    s_nop 15
    s_nop 3
{body}
    s_mov_b32 {s(S_FLAG)}, 0
    s_nop 1
    s_branch {lb}
""")
    return ops


def linv_ops():
    return [
        valu(f"v_add_f32 {v(VIL)}, {v(VL0)}, {v(VL1)}", [v(VL0), v(VL1)], [v(VIL)]),
        valu(f"v_mov_b32 {v(VT)}, {v(VIL)}", [v(VIL)], [v(VT)]),
        valu(f"v_permlane32_swap_b32 {v(VT)}, {v(VIL)}", [v(VT), v(VIL)], [v(VT), v(VIL)], kind="perm"),
        valu(f"v_add_f32 {v(VIL)}, {v(VIL)}, {v(VT)}", [v(VT), v(VIL)], [v(VIL)]),
        valu(f"v_rcp_f32 {v(VIL)}, {v(VIL)}", [v(VIL)], [v(VIL)], kind="trans", cost=2),
    ]


def epilogue_tile_ops(db):
    o = VO + 16 * db
    ops = []
    nt = " nt" if cfg.O_NT else ""
    for half in range(2):
        base = o + 8 * half
        for i in range(8):
            ops.append(valu(f"v_mul_f32 {v(base+i)}, {v(base+i)}, {v(VIL)}", [v(base + i), v(VIL)], [v(base + i)]))
        d = base
        for i in range(4):
            ops.append(valu(f"v_cvt_pk_bf16_f32 {v(d+i)}, {v(base+2*i)}, {v(base+2*i+1)}",
                            [v(base + 2 * i), v(base + 2 * i + 1)], [v(d + i)]))
        ops.append(valu(f"v_permlane32_swap_b32 {v(d)}, {v(d+2)}", [v(d), v(d + 2)], [v(d), v(d + 2)], kind="perm"))
        ops.append(valu(f"v_permlane32_swap_b32 {v(d+1)}, {v(d+3)}", [v(d + 1), v(d + 3)], [v(d + 1), v(d + 3)], kind="perm"))
        off = db * 64 + half * 32
        oo = f" offset:{off}" if off else ""
        ops.append(I(f"buffer_store_dwordx4 {v(d,4)}, {v(VQO)}, {s(SO,4)}, {s(S_OO)} offen{oo}{nt}", "vst",
                     rd=vr(d, 4) + [v(VQO), s(S_OO)] + sr(SO, 4), cost=2))
    return ops


def spread(ops, g0, g1, gaps):
    total = sum(o.cost for o in ops)
    n = g1 - g0 + 1
    cum = 0.0
    cur = g0
    for o in ops:
        g = g0 + int((cum + 0.5 * o.cost) / total * n)
        g = min(max(g, cur), g1)
        if o.earliest is not None:
            g = max(g, o.earliest)
        if o.latest is not None:
            assert g <= o.latest or True
            g = min(g, o.latest)
            assert g >= cur, "order violation"
        cur = g
        gaps.setdefault(g, []).append(o)
        cum += o.cost


def rot_ring():
    return [salu(f"s_mov_b32 {s(S_T0)}, {s(S_R0)}", rd=[s(S_R0)], wr=[s(S_T0)]),
            salu(f"s_mov_b32 {s(S_R0)}, {s(S_R1)}", rd=[s(S_R1)], wr=[s(S_R0)]),
            salu(f"s_mov_b32 {s(S_R1)}, {s(S_R2)}", rd=[s(S_R2)], wr=[s(S_R1)]),
            salu(f"s_mov_b32 {s(S_R2)}, {s(S_T0)}", rd=[s(S_T0)], wr=[s(S_R2)])]


def k_addr_adv():
    ops = [salu(f"s_sub_u32 {s(S_T1)}, {s(S_R2)}, {s(S_R1)}", rd=[s(S_R2), s(S_R1)], wr=[s(S_T1), "scc"])]
    for i in range(4):
        ops.append(valu(f"v_add_u32 {v(VKA+i)}, {s(S_T1)}, {v(VKA+i)}", [s(S_T1), v(VKA + i)], [v(VKA + i)]))
    return ops


def v_addr_adv():
    ops = [salu(f"s_sub_u32 {s(S_T1)}, {s(S_R0)}, {s(S_R2)}", rd=[s(S_R0), s(S_R2)], wr=[s(S_T1), "scc"])]
    for i in range(2):
        ops.append(valu(f"v_add_u32 {v(VVA+i)}, {s(S_T1)}, {v(VVA+i)}", [s(S_T1), v(VVA + i)], [v(VVA + i)]))
    return ops


def touch_ops():
    ops = []
    stride = 12288 // cfg.TOUCH_N
    for n in range(cfg.TOUCH_N):
        if n == 0:
            so = S_QN
        else:
            ops.append(salu(f"s_add_u32 {s(S_T1)}, {s(S_QN)}, {n*stride}", rd=[s(S_QN)], wr=[s(S_T1), "scc"]))
            so = S_T1
        ops.append(I(f"buffer_load_dword {v(VDUM)}, {v(VTO)}, {s(SQ,4)}, {s(so)} offen", "vtouch",
                     rd=[v(VTO), s(so)] + sr(SQ, 4), cost=2))
    return ops


def build():
    L = cfg.LEAD
    NG = 8 * 48
    gaps = {}
    sm = {}
    for j in range(8):
        tile = (j + 1) % 8
        ops = softmax_ops(tile & 1, tile == 0)
        if tile == 0:
            ops = linv_ops() + ops
        sm[tile] = ops
        tmp = {}
        spread(ops, 48 * j + 24, 48 * (j + 1) + 22, tmp)
        for g, l in tmp.items():
            gaps.setdefault(g, []).append(("sm", tile, l))
    ep = []
    for db in range(6):
        ops = epilogue_tile_ops(db)
        for o in ops:
            o.earliest = 7 * 48 + 24 + 4 * db + 3 + 3
            o.latest = NG + 24 + 4 * db - 2
        ep += ops
    tmp = {}
    spread(ep, 7 * 48 + 24 + 6, NG + 24 + 16, tmp)
    for g, l in tmp.items():
        gaps.setdefault(g, []).append(("ep", None, l))

    def fillers(g, allow):
        out = []
        for gg in (g, g + NG):
            for kind, tile, l in gaps.get(gg, []):
                if allow(kind, tile, gg):
                    out += l
        return out

    def part1(j, do_mfma=True, allow=lambda k, t, g: True, prologue=False, tail=False):
        code = []
        b = (j + 1) & 1
        for k in range(24):
            g = 48 * j + k
            if do_mfma:
                code.append(qk_mfma(k, b))
                if j == 6 and k >= 12 and not prologue:
                    code.append(q_load(k - 12, S_QN))
                if k + L < 24:
                    code += k_read(k + L)
            if k + L >= 24 and not prologue:
                code += v_read(k + L - 24)
            if not prologue:
                if k == 1:
                    code += v_addr_adv()
                if k == 2 and j != 0 and True:
                    code += rescaleB_check()
                if k == cfg.BK_GAP:
                    code.append(wait_dma(("V", j)))
                    code.append(barrier())
                    if not tail and j != 6:
                        code += dma("V", ("V", j + 2))
                        code.append(dma_adv("V", (j + 2) % 8))
                if k == 23 and j == 6 and not tail:
                    code += dma("V", ("V", j + 2))
                    code.append(dma_adv("V", (j + 2) % 8))
                if j == cfg.TOUCH_ITER and k == 4 and cfg.TOUCH_N:
                    code += touch_ops()
                code += fillers(g, allow)
        return code

    def part2(j, do_mfma=True, allow=lambda k, t, g: True, prologue=False, tail=False):
        code = []
        b = j & 1
        for k in range(24):
            g = 48 * j + 24 + k
            if do_mfma:
                code.append(pv_mfma(k, b, j == 0))
                if k + L < 24:
                    code += v_read(k + L)
            if k + L >= 24 and not tail:
                code += k_read(k + L - 24)
            if k == 1 and not tail:
                code += k_addr_adv()
            if k == cfg.BV_GAP and not tail:
                code.append(wait_dma(("K", j + 2)))
                code.append(barrier())
                code += dma("K", ("K", j + 4))
                code.append(dma_adv("K", (j + 4) % 8))
            if k == 22 and j == 7 and not tail:
                pass
            code += fillers(g, allow)
        if not tail:
            code += rot_ring()
        return code

    sec = {}
    linv_ids = set(id(o) for o in sm[0][:5])
    pro = []
    pro.append(wait_dma(("K", 0 + 8)))
    pro.append(barrier())
    for k in range(L):
        pro += k_read(k)
    pro += part1(7, True, prologue=True)
    sm0_copy = {}

    def clone(o):
        c = I(o.text, o.kind, o.rd, o.wr, o.cost, o.tag, o.rdc)
        return c

    p2 = part2(7, False, allow=lambda k, t, g: k == "sm", prologue=True)
    p2 = [clone(o) for o in p2 if id(o) not in linv_ids]
    pro += p2
    sec["pro"] = pro

    body_a = []
    for j in range(7):
        body_a += part1(j)
        if j == 0:
            pass
        body_a += part2(j)
    sec["body_a"] = body_a
    body_b = part1(7)
    body_b += [salu(f"s_mov_b32 {s(S_OO)}, {s(S_QC)}", rd=[s(S_QC)], wr=[s(S_OO)]),
               salu(f"s_mov_b32 {s(S_QC)}, {s(S_QN)}", rd=[s(S_QN)], wr=[s(S_QC)]),
               salu(f"s_add_u32 {s(S_QN)}, {s(S_QN)}, {ITEM_STRIDE}", rd=[s(S_QN)], wr=[s(S_QN), "scc"])]
    body_b += part2(7)
    sec["body_b"] = body_b

    t1 = [clone(o) for o in part1_tail(part1)]
    tail = t1
    tail += [salu(f"s_mov_b32 {s(S_OO)}, {s(S_QC)}", rd=[s(S_QC)], wr=[s(S_OO)])]
    tail += [clone(o) for o in linv_ops()]
    b = 1
    eq = []
    for k in range(24):
        tail.append(pv_mfma(k, b, False))
        if k + L < 24:
            tail += v_read(k + L)
        db = k // 4
        if k % 4 == 3 and db >= 1:
            pass
        dbr = (k - 6) // 4 if k >= 6 else -1
        if k >= 6 and (k - 6) % 4 == 0:
            eq += epilogue_tile_ops(dbr)
        take = eq[:8]
        eq = eq[8:]
        tail += take
    tail += eq
    tail += epilogue_tile_ops(5)
    sec["tail"] = tail
    return sec


def part1_tail(part1):
    code = part1(7, False, allow=lambda k, t, g: k == "sm" and t == 7, tail=True)
    for o in code:
        assert o.kind != "branch", "softmax branch must be in part 2"
    return code


def simulate(path, fix):
    lgq = []
    vmq = []
    changed = False
    pos = 0
    last_valu_w = {}
    last_trans_w = {}
    last_mfma_w = {}
    last_mfma_c = {}
    last_st_rd = {}
    last_valu_sw = {}
    last_m0 = -100
    for ins, base in path:
        k = ins.kind
        regs = set(ins.rd) | set(ins.wr) | set(ins.rdc)
        need_lg = None
        for idx, rs in enumerate(lgq):
            if rs & regs:
                need_lg = len(lgq) - 1 - idx
        need_vm = None
        for idx, (rs, tg) in enumerate(vmq):
            if rs & regs:
                need_vm = len(vmq) - 1 - idx
            if k == "waitdma" and tg == (ins.tag[0], ins.tag[1] + base):
                need_vm = len(vmq) - 1 - idx
        if need_lg is not None:
            assert need_lg <= 15
            if ins.lg is None or ins.lg > need_lg:
                assert fix, f"lgkm wait missing at {ins.text}"
                ins.lg = need_lg
                changed = True
        if need_vm is not None:
            assert need_vm <= 63
            if ins.vm is None or ins.vm > need_vm:
                assert fix, f"vm wait missing at {ins.text}"
                ins.vm = need_vm
                changed = True
        if ins.lg is not None:
            lgq = lgq[len(lgq) - ins.lg:] if ins.lg < len(lgq) and ins.lg > 0 else ([] if ins.lg == 0 else lgq)
        if ins.vm is not None:
            vmq = vmq[len(vmq) - ins.vm:] if ins.vm < len(vmq) and ins.vm > 0 else ([] if ins.vm == 0 else vmq)
        if ins.lg is not None or ins.vm is not None:
            pos += 1
        if k == "waitdma":
            continue
        req = 0

        def need(lastpos, ws):
            nonlocal req
            have = pos - lastpos - 1
            if ws - have > req:
                req = ws - have

        isvalu = k in ("valu", "trans", "perm")
        if k == "mfma":
            for r in ins.rd + ins.rdc:
                if r in last_valu_w:
                    need(last_valu_w[r], 2)
            for r in ins.rd:
                if r in last_mfma_w:
                    need(last_mfma_w[r][0], 12)
            for r in ins.rdc:
                if r in last_mfma_w and last_mfma_w[r][1] != ins.wr[0]:
                    need(last_mfma_w[r][0], 10)
        if isvalu or k in ("branch",):
            for r in ins.rd + ins.wr:
                if r in last_mfma_w:
                    need(last_mfma_w[r][0], 12)
            for r in ins.wr:
                if r in last_mfma_c:
                    need(last_mfma_c[r], 7)
                if r in last_st_rd:
                    need(last_st_rd[r], 2)
            if k != "trans":
                for r in ins.rd:
                    if r in last_trans_w:
                        need(last_trans_w[r], 1)
            if k == "perm":
                for r in ins.rd:
                    if r in last_valu_w:
                        need(last_valu_w[r], 2)
            if isvalu:
                for r in ins.rd:
                    if r in last_valu_sw:
                        need(last_valu_sw[r], 2)
        if k in ("ds", "vld", "vst", "dma", "vtouch"):
            for r in ins.rd + ins.wr:
                if r in last_mfma_w:
                    need(last_mfma_w[r][0], 12)
            for r in ins.rd:
                if r in last_valu_sw:
                    need(last_valu_sw[r], 5)
            if k in ("ds", "vld"):
                for r in ins.wr:
                    if r in last_st_rd:
                        need(last_st_rd[r], 2)
        if k == "dma":
            need(last_m0, 1)
        if req > ins.nop:
            assert fix, f"hazard at {ins.text}"
            ins.nop = req
            changed = True
        pos += ins.nop
        if k == "ds":
            lgq.append(set(ins.wr))
        if k in ("vld", "vst", "dma", "vtouch"):
            tg = (ins.tag[0], ins.tag[1] + base) if ins.tag else None
            vmq.append((set(ins.wr), tg))
        if isvalu or k == "branch":
            for r in ins.wr:
                if r[0] == "v" and r != "vcc":
                    last_valu_w[r] = pos
                    last_mfma_w.pop(r, None)
                    if k == "trans" or k == "branch":
                        last_trans_w[r] = pos
                    else:
                        last_trans_w.pop(r, None)
                else:
                    last_valu_sw[r] = pos
        if k == "branchB":
            for r in vr(VO, 96):
                last_valu_w[r] = pos - 2
        if k == "mfma":
            for r in ins.wr:
                last_mfma_w[r] = (pos, ins.wr[0])
                last_valu_w.pop(r, None)
                last_trans_w.pop(r, None)
            for r in ins.rdc:
                last_mfma_c[r] = pos
        if k in ("ds", "vld"):
            for r in ins.wr:
                last_mfma_w.pop(r, None)
                last_valu_w.pop(r, None)
                last_trans_w.pop(r, None)
        if k == "vst":
            for r in ins.rd:
                if r[0] == "v":
                    last_st_rd[r] = pos
        if k == "salu" and "m0" in ins.wr:
            last_m0 = pos
        if k == "salu":
            for r in ins.wr:
                last_valu_sw.pop(r, None)
        pos += 1
    return changed


def emit(code):
    out = []
    for ins in code:
        w = []
        if ins.vm is not None:
            w.append(f"vmcnt({ins.vm})")
        if ins.lg is not None:
            w.append(f"lgkmcnt({ins.lg})")
        if w:
            out.append("    s_waitcnt " + " ".join(w))
        n = ins.nop
        while n > 0:
            c = min(n, 16)
            out.append(f"    s_nop {c-1}")
            n -= c
        if ins.text:
            out.append("    " + ins.text)
    return "\n".join(out)


def f32hex(x):
    import struct
    return "0x%08x" % struct.unpack("<I", struct.pack("<f", x))[0]


def setup_code():
    c = math.log2(math.e) / math.sqrt(192.0)
    T = []
    A = T.append
    A(f"    s_cmp_ge_u32 s2, 256")
    A(f"    s_cbranch_scc1 L_end")
    A(f"    s_load_dwordx8 {s(S_P,8)}, s[0:1], 0")
    A(f"    v_lshrrev_b32 v1, 6, v0")
    A(f"    v_and_b32 v2, 63, v0                  ; lane")
    A(f"    v_readfirstlane_b32 {s(S_T0)}, v1      ; wave")
    A(f"    s_mov_b32 {s(S_C)}, {f32hex(c)}")
    A(f"    s_mov_b32 {s(S_NEGC)}, {f32hex(-c)}")
    A(f"    s_mov_b32 {s(S_TC)}, {f32hex(cfg.THR / c)}")
    A(f"    s_mov_b32 {s(S_NINVC)}, {f32hex(-1.0 / c)}")
    A(f"    s_mov_b32 {s(S_ITEM)}, 4")
    A(f"    s_mov_b32 {s(S_FLAG)}, 0")
    A(f"    s_lshr_b32 s3, s2, 4")
    A(f"    s_lshl_b32 s3, s3, 3")
    A(f"    s_and_b32 {s(S_T1)}, s2, 7")
    A(f"    s_add_u32 s3, s3, {s(S_T1)}")
    A(f"    s_mul_i32 s3, s3, {HEAD_BYTES}")
    A(f"    s_mov_b32 {s(S_KO)}, s3")
    A(f"    s_mov_b32 {s(S_VO)}, s3")
    A(f"    s_lshr_b32 {s(S_T1)}, s2, 3")
    A(f"    s_and_b32 {s(S_T1)}, {s(S_T1)}, 1")
    A(f"    s_mul_i32 {s(S_T1)}, {s(S_T1)}, 98304")
    A(f"    s_add_u32 s3, s3, {s(S_T1)}")
    A(f"    s_mul_i32 {s(S_T1)}, {s(S_T0)}, 12288")
    A(f"    s_add_u32 {s(S_QC)}, s3, {s(S_T1)}")
    A(f"    s_add_u32 {s(S_QN)}, {s(S_QC)}, {ITEM_STRIDE}")
    A(f"    s_mov_b32 {s(S_OO)}, 0x80000000")
    A(f"    s_mul_i32 {s(S_WV)}, {s(S_T0)}, 3072")
    A(f"    s_add_u32 {s(S_WVV)}, {s(S_WV)}, {VBASE}")
    A(f"    v_and_b32 v3, 31, v2                  ; r = lane&31")
    A(f"    v_lshrrev_b32 v4, 5, v2               ; h")
    A(f"    v_mul_u32_u24 v5, 384, v3             ; r*384")
    A(f"    v_lshl_add_u32 {v(VQO)}, v4, 4, v5     ; q/o voffset")
    A(f"    v_bfe_u32 v6, v3, 1, 3                ; f")
    A(f"    v_xor_b32 v6, v6, v4                  ; f^h")
    for u in range(4):
        A(f"    v_xor_b32 v7, {2*u}, v6")
        A(f"    v_lshl_add_u32 {v(VKA+u)}, v7, 4, v5")
    A(f"    v_lshrrev_b32 v6, 4, v2               ; g = lane>>4")
    A(f"    v_bfe_u32 v7, v2, 2, 2                ; r_")
    A(f"    v_lshrrev_b32 v8, 1, v6               ; g>>1")
    A(f"    v_lshl_add_u32 v8, v8, 2, v7          ; row = 4*(g>>1)+r_")
    A(f"    v_mul_u32_u24 v8, 384, v8")
    A(f"    v_and_b32 v9, 1, v6")
    A(f"    v_lshl_add_u32 v8, v9, 5, v8          ; + (g&1)*32")
    A(f"    v_and_b32 v9, 3, v2")
    A(f"    v_lshl_add_u32 v8, v9, 3, v8          ; + c_*8")
    A(f"    v_add_u32 v8, {VBASE + 2*TILE}, v8")
    A(f"    v_lshrrev_b32 v9, 1, v7               ; x = r_>>1")
    A(f"    v_lshl_add_u32 {v(VVA)}, v9, 6, v8     ; p=0: x*64")
    A(f"    v_xor_b32 v9, 1, v9")
    A(f"    v_lshl_add_u32 {v(VVA+1)}, v9, 6, v8   ; p=1: (1^x)*64")
    A(f"    v_lshrrev_b32 v6, 3, v2")
    A(f"    v_and_b32 v10, 1, v1                  ; wave&1")
    A(f"    v_lshlrev_b32 v10, 2, v10")
    A(f"    v_mul_u32_u24 v11, 3072, v1")
    for n in range(3):
        A(f"    v_add_u32 v7, {8*n}, v6")
        A(f"    v_mul_u32_u24 v7, 43, v7")
        A(f"    v_lshrrev_b32 v7, 8, v7               ; row>>1  ((x*43)>>7)>>1")
        A(f"    v_or_b32 v8, v7, v10                  ; f_k")
        A(f"    v_xor_b32 v8, v8, v2")
        A(f"    v_lshl_add_u32 {v(VDK+n)}, v8, 4, v11")
        A(f"    v_and_b32 v8, 1, v7")
        A(f"    v_lshlrev_b32 v8, 2, v8               ; f_v")
        A(f"    v_xor_b32 v8, v8, v2")
        A(f"    v_lshl_add_u32 {v(VDV+n)}, v8, 4, v11")
    if cfg.TOUCH_N:
        A(f"    v_mul_u32_u24 {v(VTO)}, {12288 // cfg.TOUCH_N // 64}, v2")
    else:
        A(f"    v_mov_b32 {v(VTO)}, 0")
    A(f"    v_mov_b32 {v(VIL)}, 0")
    A(f"    s_waitcnt lgkmcnt(0)")
    for i, srd in enumerate((SQ, SK, SV, SO)):
        A(f"    s_mov_b32 {s(srd)}, {s(S_P+2*i)}")
        A(f"    s_and_b32 {s(srd+1)}, {s(S_P+2*i+1)}, 0xffff")
        A(f"    s_mov_b32 {s(srd+2)}, {TOTAL}")
        A(f"    s_mov_b32 {s(srd+3)}, 0x00020000")
    if cfg.PRIO:
        A(f"    s_cmp_ge_u32 {s(S_T0)}, 4")
        A(f"    s_cbranch_scc0 L_noprio")
        A(f"    s_setprio 1")
        A(f"L_noprio:")
    return "\n".join(T)


def initial_loads():
    ops = []

    def setr(r1, r2):
        ops.append(salu(f"s_mov_b32 {s(S_R1)}, {r1}", wr=[s(S_R1)]))
        ops.append(salu(f"s_mov_b32 {s(S_R2)}, {r2}", wr=[s(S_R2)]))

    setr(0, 0)
    ops += dma("K", ("K", 8)); ops.append(dma_adv("K", 0))
    for st in range(12):
        ops.append(q_load(st, S_QC))
    setr(TILE, 0)
    ops += dma("K", ("K", 9)); ops.append(dma_adv("K", 1))
    ops += dma("V", ("V", 8)); ops.append(dma_adv("V", 0))
    setr(2 * TILE, TILE)
    ops += dma("K", ("K", 10)); ops.append(dma_adv("K", 2))
    ops += dma("V", ("V", 9)); ops.append(dma_adv("V", 1))
    ops.append(salu(f"s_mov_b32 {s(S_R0)}, {2*TILE}", wr=[s(S_R0)]))
    setr(0, TILE)
    return ops


def main():
    ap = argparse.ArgumentParser()
    ap.add_argument("-o", default=f"cdna_kernels/{NAME}.s")
    ap.add_argument("--set", action="append", default=[])
    a = ap.parse_args()
    for kv in a.set:
        k, val = kv.split("=")
        cur = getattr(cfg, k)
        setattr(cfg, k, type(cur)(eval(val)))
    sec = build()
    init = initial_loads()
    loopctl_a = [salu(f"s_cmp_eq_u32 {s(S_ITEM)}, 1", rd=[s(S_ITEM)], wr=["scc"]),
                 I("s_cbranch_scc1 L_tail", "salu", rd=["scc"], cost=0.5)]
    loopctl_b = [salu(f"s_sub_u32 {s(S_ITEM)}, {s(S_ITEM)}, 1", rd=[s(S_ITEM)], wr=[s(S_ITEM), "scc"]),
                 I("s_branch L_body", "salu", cost=0.5)]
    pro = init + sec["pro"]
    A = sec["body_a"] + loopctl_a
    B = sec["body_b"] + loopctl_b
    T = sec["tail"]

    def mk(seq):
        p = []
        for code, base in seq:
            p += [(i, base) for i in code]
        return p

    paths = [
        mk([(pro, -8), (A, 0), (B, 0), (A, 8), (B, 8), (A, 16), (T, 16)]),
        mk([(pro, -8), (A, 0), (T, 0)]),
    ]
    for it in range(20):
        ch = False
        for p in paths:
            ch |= simulate(p, True)
        if not ch:
            break
    for p in paths:
        simulate(p, False)

    hdr = open(f"cdna_kernels/{NAME}.s.ref").read().split("; Override")[0]
    out = hdr
    out += "; Generated by gen/gen.py (own generator script).\n"
    out += f"; @launch grid=(256,1,1) block=(512,1,1) lds={6*TILE}\n"
    out += f""".amdgcn_target "amdgcn-amd-amdhsa--gfx950"
.text
.globl {NAME}_kernel
.p2align 8
.type {NAME}_kernel,@function
{NAME}_kernel:
"""
    out += setup_code() + "\n"
    out += emit(pro) + "\n"
    out += ".p2align 6\nL_body:\n" + emit(A) + "\n" + emit(B) + "\n"
    out += "L_tail:\n" + emit(T) + "\n"
    out += "L_end:\n    s_endpgm\n"
    out += "\n".join(OUTLINE)
    out += f"""    s_endpgm
.section .rodata,"a"
.p2align 6
.amdhsa_kernel {NAME}_kernel
  .amdhsa_next_free_vgpr 256
  .amdhsa_next_free_sgpr 64
  .amdhsa_accum_offset 256
  .amdhsa_group_segment_fixed_size 0
  .amdhsa_kernarg_size 48
  .amdhsa_user_sgpr_count 2
  .amdhsa_user_sgpr_kernarg_segment_ptr 1
  .amdhsa_system_sgpr_workgroup_id_x 1
.end_amdhsa_kernel
"""
    open(a.o, "w").write(out)
    nn = sum(i.nop for i in A + B)
    print(f"wrote {a.o}: body instrs {len(A)+len(B)}, nops {nn}")


if __name__ == "__main__":
    main()
```
